```python
import torch

def _softmax(x, axis=-1):
    return torch.softmax(x, dim=axis)
def _gelu(x):
    return torch.nn.functional.gelu(x, approximate="tanh")
def _silu(x):
    return torch.nn.functional.silu(x)
def _sigmoid(x):
    return torch.sigmoid(x)
def _layernorm(x, axis=-1, eps=1e-5):
    m = x.mean(dim=axis, keepdim=True)
    v = x.var(dim=axis, keepdim=True, unbiased=False)
    return (x - m) / torch.sqrt(v + eps)
def _scatter_add(tgt, idx, src, axis=0):
    return tgt.clone().index_add_(axis, idx, src)
def _segment_sum(src, seg, n):
    out = torch.zeros((n,) + src.shape[1:], dtype=src.dtype)
    return out.index_add_(0, seg, src)
def _pad(x, pw):
    flat = tuple(v for pair in reversed(pw) for v in pair)
    return torch.nn.functional.pad(x, flat)

kernel_name = 'recurrent_scan__spectral_fnet__moe_arch_mod__prompt'

def setup_inputs():

    _w = (lambda a: (lambda t: t.to(torch.bfloat16) if t.is_floating_point() else t)(torch.as_tensor(a)))
    def _A_setup():
        B, S, D = 1, 2048, 640
        ns = torch.arange(S)[:, None] * torch.arange(S)[None, :]
        nd = torch.arange(D)[:, None] * torch.arange(D)[None, :]
        Ws_re = torch.cos(-2.0 * torch.pi * ns / S).to(float)
        Ws_im = torch.sin(-2.0 * torch.pi * ns / S).to(float)
        Wd_re = torch.cos(-2.0 * torch.pi * nd / D).to(float)
        Wd_im = torch.sin(-2.0 * torch.pi * nd / D).to(float)
        return {
            "x": _w((lambda *s: torch.randn(*s, dtype=torch.bfloat16) * 0.1)(B, S, D)),
            "dft_seq_re": _w(Ws_re),
            "dft_seq_im": _w(Ws_im),
            "dft_hid_re": _w(Wd_re),
            "dft_hid_im": _w(Wd_im),
        }
    _A_in = _A_setup()

    def _B_setup():
        B, S, D, F, C = 1, 2048, 640, 1728, 2
        return {
            "x": _w((lambda *s: torch.randn(*s, dtype=torch.bfloat16) * 0.1)(B, S, D)),
            "w_r": _w((lambda *s: torch.randn(*s, dtype=torch.bfloat16) * 0.1)(D)),
            "w_gate": _w((lambda *s: torch.randn(*s, dtype=torch.bfloat16) * 0.1)(D, F)),
            "w_up": _w((lambda *s: torch.randn(*s, dtype=torch.bfloat16) * 0.1)(D, F)),
            "w_down": _w((lambda *s: torch.randn(*s, dtype=torch.bfloat16) * 0.1)(F, D)),
        }
    _B_in = _B_setup()

    return {
        "A_x": _A_in["x"],
        "A_dft_seq_re": _A_in["dft_seq_re"],
        "A_dft_seq_im": _A_in["dft_seq_im"],
        "A_dft_hid_re": _A_in["dft_hid_re"],
        "A_dft_hid_im": _A_in["dft_hid_im"],
        "B_x": _B_in["x"],
        "B_w_r": _B_in["w_r"],
        "B_w_gate": _B_in["w_gate"],
        "B_w_up": _B_in["w_up"],
        "B_w_down": _B_in["w_down"],
    }

def reference(A_x, A_dft_seq_re, A_dft_seq_im, A_dft_hid_re, A_dft_hid_im, B_x, B_w_r, B_w_gate, B_w_up, B_w_down):
    def _A_ref(x, dft_seq_re, dft_seq_im, dft_hid_re, dft_hid_im):
        a = torch.einsum("bsd,ed->bse", x, dft_hid_re)
        b = torch.einsum("bsd,ed->bse", x, dft_hid_im)
        y = torch.einsum("ts,bse->bte", dft_seq_re, a) - torch.einsum("ts,bse->bte", dft_seq_im, b)
        return y

    def _B_ref(x, w_r, w_gate, w_up, w_down):
        B, S, D = x.shape
        C = 2
        r = x @ w_r
        idx = torch.argsort(-r, axis=-1)[:, :C]
        idx_e = (lambda x, n, axis: torch.repeat_interleave(x, n, dim=axis))(idx.reshape(B, C, 1), D, axis=2)
        x_sel = (lambda x, i, axis: torch.take_along_dim(x, i, dim=axis))(x, idx_e, axis=1)
        g = _silu(x_sel @ w_gate)
        u = x_sel @ w_up
        y = (g * u) @ w_down
        r_sel = _sigmoid((lambda x, i, axis: torch.take_along_dim(x, i, dim=axis))(r, idx, axis=1))
        y = y * r_sel.reshape(B, C, 1)
        b_off = (torch.arange(B) * S).reshape(B, 1)
        flat_idx = (idx + b_off).reshape(B * C)
        zero = (x * 0.0).reshape(B * S, D)
        upd = _scatter_add(zero, flat_idx, y.reshape(B * C, D), axis=0)
        return x + upd.reshape(B, S, D)

    x = A_x
    xn = _layernorm(x, axis=-1)
    s = _A_ref(xn, A_dft_seq_re, A_dft_seq_im, A_dft_hid_re, A_dft_hid_im)
    g = _silu(_B_ref(xn, B_w_r, B_w_gate, B_w_up, B_w_down))
    return x + s * g
```

```python
import re
NAME = "recurrent_scan__spectral_fnet__moe_arch_mod__prompt"
_REG = re.compile(r"^(-|\|)?(abs\()?([vsa])(\d+|\[(\d+):(\d+)\])\)?\|?$")
def regs_of(tok):
    tok = tok.strip()
    if tok in ("vcc",): return {("s", 106), ("s", 107)}
    if tok == "vcc_lo": return {("s", 106)}
    if tok == "vcc_hi": return {("s", 107)}
    if tok == "exec": return {("s", 126), ("s", 127)}
    if tok == "exec_lo": return {("s", 126)}
    if tok == "exec_hi": return {("s", 127)}
    if tok == "m0": return {("s", 124)}
    m = _REG.match(tok)
    if not m: return set()
    k = m.group(3)
    if m.group(5) is not None: return {(k, i) for i in range(int(m.group(5)), int(m.group(6)) + 1)}
    return {(k, int(m.group(4)))}
TRANS = ("v_exp_", "v_log_", "v_rcp_", "v_rsq_", "v_sqrt_", "v_sin_", "v_cos_")
class Ins:
    def __init__(self, text):
        self.text = text
        t = text.split(";")[0].strip()
        parts = t.split(None, 1)
        self.mn = parts[0]
        rest = parts[1] if len(parts) > 1 else ""
        ops = [o.strip() for o in rest.split(",")] if rest else []
        self.mods = ""
        if ops:
            last = ops[-1].split(None, 1)
        m = re.search(r"\s(op_sel|op_sel_hi|neg_lo|neg_hi|offen|offset|offset0|offset1|row_|quad_perm|wave_|sc0|sc1|nt|lds|clamp|dst_sel|src0_sel|bound_ctrl|cbsz|idxen|glc|mul:|div:)", " " + rest)
        if m:
            self.mods = (" " + rest)[m.start():]
            rest = (" " + rest)[:m.start()]
            ops = [o.strip() for o in rest.split(",")] if rest.strip() else []
        self.ops = ops
        mn = self.mn
        self.mfma = mn.startswith("v_mfma")
        self.valu = mn.startswith("v_") and not self.mfma
        self.trans = mn.startswith(TRANS)
        self.dot = mn.startswith("v_dot")
        self.vmem = mn.startswith(("buffer_", "global_"))
        self.ds = mn.startswith("ds_")
        self.salu = mn.startswith("s_")
        self.dpp = "_dpp" in mn or "row_" in self.mods or "quad_perm" in self.mods or "wave_" in self.mods
        self.permlane = mn.startswith("v_permlane")
        self.rdlane = mn.startswith(("v_readlane", "v_readfirstlane"))
        self.wrlane = mn.startswith("v_writelane")
        R = [regs_of(o) for o in ops]
        self.w = set(); self.r = set(); self.srcc = set(); self.sdata = set(); self.ab = set()
        self.passes = 0
        if self.mfma:
            self.w = R[0]; self.ab = R[1] | R[2]; self.srcc = R[3]; self.r = self.ab | self.srcc
            self.passes = 8 if "32x32" in mn else 4
        elif self.valu:
            nd = 2 if ("_co_" in mn or mn.startswith(("v_div_scale", "v_mad_u64"))) else 1
            if mn.startswith(("v_swap", "v_permlane16_swap", "v_permlane32_swap")):
                self.w = R[0] | R[1]; self.r = R[0] | R[1]
            else:
                for x in R[:nd]: self.w |= x
                for x in R[nd:]: self.r |= x
                if mn.startswith(("v_fmac", "v_dot2c", "v_writelane", "v_pk_fmac")) or self.dpp or "mixlo" in mn or "mixhi" in mn: self.r |= R[0]
            if mn.startswith("v_cmpx"): self.w |= regs_of("exec")
        elif self.vmem:
            if "_load" in mn and " lds" not in self.mods and "_lds_" not in mn:
                self.w = R[0]
                for x in R[1:]: self.r |= x
                if "d16" in mn: self.r |= R[0]
            else:
                for x in R: self.r |= x
                if "store" in mn or "atomic" in mn:
                    d = R[0] if mn.startswith("buffer_") else R[1]
                    if len(d) >= 3: self.sdata = d
                    if "atomic" in mn and "sc0" in self.mods: self.w = d
        elif self.ds:
            if mn.startswith(("ds_read", "ds_bpermute", "ds_permute", "ds_swizzle")) or "_rtn" in mn:
                self.w = R[0]
                for x in R[1:]: self.r |= x
            else:
                for x in R: self.r |= x
        elif self.salu:
            if mn.startswith(("s_cmp", "s_cbranch", "s_branch", "s_waitcnt", "s_nop", "s_barrier", "s_sleep", "s_endpgm", "s_setprio", "s_bitcmp")):
                for x in R: self.r |= x
            elif R:
                self.w = R[0]
                for x in R[1:]: self.r |= x
                if "saveexec" in mn: self.w |= regs_of("exec")
        self.states = 1
        if mn == "s_nop": self.states = int(ops[0], 0) + 1
def V(s): return {x for x in s if x[0] in "va"}
def S(s): return {x for x in s if x[0] == "s"}
EXEC = {("s", 126), ("s", 127)}
def need(p, c):
    n = 0
    if p.valu:
        wv, ws = V(p.w), S(p.w)
        if c.valu and c.dpp and wv & c.r: n = max(n, 2)
        if c.permlane and wv & c.r: n = max(n, 2)
        if c.mfma and wv & c.r: n = max(n, 2)
        if c.rdlane and wv & c.r: n = max(n, 1)
        if p.trans and c.valu and not c.trans and wv & c.r: n = max(n, 1)
        if p.trans and (c.mfma or c.vmem or c.ds) and wv & c.r: n = max(n, 2)
        if ws & c.r:
            if c.valu: n = max(n, 4 if (c.rdlane or c.wrlane) else 2)
            if c.vmem: n = max(n, 5)
            if c.salu: n = max(n, 1)
        if ws & EXEC:
            if c.dpp: n = max(n, 5)
            if c.mfma or c.rdlane or c.wrlane or c.permlane: n = max(n, 4)
        if p.dot and (c.valu or c.mfma or c.vmem or c.ds) and wv & (c.r | c.w):
            if c.mn == p.mn:
                cc = regs_of(c.ops[0]) if "dot2c" in c.mn else regs_of(c.ops[3])
                ab = regs_of(c.ops[1]) | regs_of(c.ops[2])
                if wv & ab: n = max(n, 3)
            else: n = max(n, 3)
        if "op_sel" in p.mods and not p.mn.startswith("v_pk") and not p.dot and c.valu and wv & c.r: n = max(n, 1)
        if ("sdwa" in p.mn or "mixhi" in p.mn or "mixlo" in p.mn) and c.valu and wv & (c.r | c.w): n = max(n, 1)
    if p.mfma:
        big = {4: 8, 8: 12}[p.passes]
        if c.mfma:
            if p.w & c.ab: n = max(n, big)
            if p.w & c.srcc and not (p.w == c.srcc and p.passes == c.passes): n = max(n, big - 2)
            if p.w & c.w and not (p.w == c.srcc): n = max(n, big - 2)
        elif (c.valu or c.vmem or c.ds) and p.w & (c.r | c.w): n = max(n, big)
        if c.valu and p.srcc & c.w: n = max(n, {4: 3, 8: 7}[p.passes])
    if p.sdata and (c.valu or c.mfma) and p.sdata & c.w: n = max(n, 2)
    if p.salu and ("s", 124) in p.w and (c.vmem and (" lds" in c.mods or "_lds_" in c.mn)): n = max(n, 1)
    return n
class Asm:
    def __init__(self):
        self.lines = []; self.nlabel = 0; self.hist = []; self.nops = 0; self.count = 0
    def __call__(self, s):
        for l in s.strip("\n").split("\n"):
            l = l.strip()
            if not l: continue
            body = l.split(";")[0].strip()
            if not body or body.startswith("."):
                self.lines.append("    " + l); continue
            if body.endswith(":"):
                self.lines.append(l); continue
            c = Ins(l)
            dist = 0; pad = 0
            for p in reversed(self.hist):
                pad = max(pad, need(p, c) - dist)
                dist += p.states
                if dist > 20: break
            if pad > 0:
                self.lines.append(f"    s_nop {pad-1}"); self.hist.append(Ins(f"s_nop {pad-1}")); self.nops += 1
            self.lines.append("    " + l); self.hist.append(c); self.count += 1
            if len(self.hist) > 40: self.hist = self.hist[-40:]
    def label(self, base="L"):
        self.nlabel += 1
        return f"{base}_{self.nlabel}"
    def text(self): return "\n".join(self.lines) + "\n"
def vr(a, n=1): return f"v{a}" if n == 1 else f"v[{a}:{a+n-1}]"
def sr(a, n=1): return f"s{a}" if n == 1 else f"s[{a}:{a+n-1}]"
def kernel_text(name, body, vgpr, sgpr=100, accum=None):
    if accum is None: accum = (vgpr + 3) // 4 * 4
    return f""".text
.globl {name}
.p2align 8
.type {name},@function
{name}:
{body}
.section .rodata,"a"
.p2align 6
.amdhsa_kernel {name}
  .amdhsa_next_free_vgpr {vgpr}
  .amdhsa_next_free_sgpr {sgpr}
  .amdhsa_accum_offset {accum}
  .amdhsa_group_segment_fixed_size 0
  .amdhsa_kernarg_size 104
  .amdhsa_user_sgpr_count 2
  .amdhsa_user_sgpr_kernarg_segment_ptr 1
  .amdhsa_system_sgpr_workgroup_id_x 1
  .amdhsa_float_denorm_mode_32 3
  .amdhsa_float_denorm_mode_16_64 3
.end_amdhsa_kernel
"""
HEAD = '.amdgcn_target "amdgcn-amd-amdhsa--gfx950"\n'
def srd(a, d, base, nbytes):
    a(f"s_mov_b32 s{d}, s{base}\ns_mov_b32 s{d+1}, s{base+1}\ns_mov_b32 s{d+2}, {nbytes}\ns_mov_b32 s{d+3}, 0x20000")
```

```python
import sys
from asmlib import *
opt = dict(ts="0", spin="200000", pref="1")
for kv in sys.argv[1:]:
    k, v = kv.split("="); opt[k] = v
TS = opt["ts"] == "1"
SPIN = int(opt["spin"])
a = Asm()
STARTED = 0x1000
FLAGS = 0x10000; RSTR = 4352
KEYS = 0x60000; KREP = 16
HTAB = 0x80000; HSTR = 0x4100
UOFF = 0x100000; UROW = 1536
TSOFF = 8 << 20
WSBYTES = 16 << 20
NWG = 336
TAGINC = 0x9e3779b9
KQ = 1
DP = 672
L_STAT = 32 * DP
L_TOP = L_STAT + 512
LDS_BYTES = L_TOP + 64
L_BC = 0
L_PART = 64
L_H = 8192
X, CR, CI, WR, WI, WRR, WG, WU, WD, OUT, DBG, WS = 16, 18, 20, 22, 24, 28, 30, 32, 34, 36, 38, 40
P = lambda r: f"s[{r}:{r+1}]"
TAG, WAVE, S2R, T1, Q, PAR, H = 44, 45, 46, 47, 48, 49, 50
SGLO, SGHI, ONELO, ONEHI, ONES, OPS, MASKHI, CNT = 51, 52, 53, 54, 55, 56, 57, 58
SRDWS = 60
WSR = "s[60:63]"
DPPF = "row_mask:0xf bank_mask:0xf"
NL2E = "0xbfb8aa3b"
def stamp(i):
    if TS: a(f"s_memrealtime s[{80+2*i}:{81+2*i}]")
def dump_stamps(n):
    if not TS: return
    a(f"""
s_waitcnt lgkmcnt(0)
s_lshl_b32 s75, s2, 3
s_add_u32 s75, s75, s{WAVE}
s_lshl_b32 s75, s75, 6
s_add_u32 s75, s75, {TSOFF}
v_mov_b32 v1, 0
s_mov_b64 exec, 1
""")
    for i in range(n):
        a(f"v_mov_b32 v2, s{80+2*i}\nbuffer_store_dword v2, v1, {WSR}, s75 offen offset:{4*i}")
def rb(dst, src):
    a(f"v_cvt_pk_bf16_f32 v{dst}, v{src}, v{src}\nv_lshlrev_b32 v{dst}, 16, v{dst}")
def set_exec(mask):
    lo, hi = mask & 0xffffffff, mask >> 32
    a(f"s_mov_b32 exec_lo, {lo:#x}\ns_mov_b32 exec_hi, {hi:#x}")
def spin_tail(loop, sleep=1):
    a(f"s_sleep {sleep}\ns_sub_u32 s{CNT}, s{CNT}, 1\ns_cmp_lg_u32 s{CNT}, 0\ns_cbranch_scc1 {loop}")
def Q4(r): return f"v[{r}:{r+3}]"
def mfma16(d, x, y, c=None):
    a(f"v_mfma_f32_16x16x32_bf16 {Q4(d)}, {Q4(x)}, {Q4(y)}, {Q4(c) if c is not None else 0}")
def wave_max_u32(dst_s, v, tmp, rows):
    a(f"v_max_u32_dpp v{tmp}, v{v}, v{v} row_ror:8 {DPPF}")
    for sh in (4, 2, 1): a(f"v_max_u32_dpp v{tmp}, v{tmp}, v{tmp} row_ror:{sh} {DPPF}")
    for r in range(rows): a(f"v_readlane_b32 s{76+r}, v{tmp}, {16*r}")
    a(f"s_max_u32 s{dst_s}, s76, s77")
    if rows == 4: a(f"s_max_u32 s78, s78, s79\ns_max_u32 s{dst_s}, s{dst_s}, s78")
def ucol_offset(dst, vcol, t0, t1, hreg):
    a(f"""
v_sub_u32 v{t0}, 640, v{vcol}
v_cmp_le_u32 vcc, 320, v{vcol}
v_cndmask_b32 v{t0}, v{vcol}, v{t0}, vcc       ; e
v_cndmask_b32 v{dst}, 0, 64, vcc               ; side*64
v_and_b32 v{t1}, 1, v{t0}
v_mad_u32_u24 v{dst}, v{t1}, s59, v{dst}       ; + p*768
v_subrev_u32 v{t0}, s{hreg}, v{t0}
v_lshrrev_b32 v{t1}, 5, v{t0}                  ; n>>4
v_lshl_add_u32 v{dst}, v{t1}, 7, v{dst}
v_bfe_u32 v{t1}, v{t0}, 1, 4                   ; n&15
v_lshl_add_u32 v{dst}, v{t1}, 2, v{dst}
""")

a(f"s_cmp_ge_u32 s2, {NWG}\ns_cbranch_scc1 L_end")
stamp(0)
a(f"""
s_load_dwordx16 s[16:31], s[0:1], 0
s_load_dwordx8 s[32:39], s[0:1], 64
s_load_dwordx2 s[40:41], s[0:1], 96
""")
if opt["pref"] == "1":
    a("s_getpc_b64 s[4:5]\nv_lshlrev_b32 v1, 5, v0\nglobal_load_dword v124, v1, s[4:5]")
a(f"""
v_lshrrev_b32 v1, 6, v0
v_and_b32 v2, 15, v0
v_readfirstlane_b32 s{WAVE}, v1
v_bfe_u32 v3, v0, 4, 2
s_mov_b32 s{MASKHI}, 0xffff0000
s_mov_b32 s{ONES}, 0x3f803f80
s_mov_b32 s{SRDWS+2}, {WSBYTES}
s_mov_b32 s{SRDWS+3}, 0x20000
s_mov_b32 s{CNT}, {SPIN}
s_mov_b32 s59, 768
s_cmp_ge_u32 s2, 256
s_cbranch_scc1 L_roleFD
""")
a(f"""
s_setprio 2
s_and_b32 s64, s2, 7
s_lshr_b32 s65, s2, 3
s_lshr_b32 s66, s65, 4
s_lshl_b32 s64, s64, 1
s_add_u32 s64, s64, s66        ; slot 0..15
s_and_b32 s{Q}, s65, 3
s_and_b32 s{PAR}, s65, 1
s_bfe_u32 s{H}, s65, 0x10001
s_sub_u32 s66, 32, s64
s_cmp_eq_u32 s64, 0
s_cselect_b32 s66, 16, s66
s_bitcmp1_b32 s65, 3
s_cselect_b32 s{T1}, s66, s64
s_bfe_u32 s67, s65, 0x10002
s_lshl_b32 s67, s67, 5
s_add_u32 s{S2R}, s67, s{T1}
s_mov_b32 s{ONELO}, 0x3f80
s_mov_b32 s{ONEHI}, 0x3f800000
s_mov_b32 s{SGLO}, 0xbf80
s_cmp_eq_u32 s{PAR}, 0
s_cselect_b32 s{SGLO}, s{ONELO}, s{SGLO}
s_cselect_b32 s{OPS}, -2.0, 0
s_cselect_b32 s68, 6, 5
s_lshl_b32 s{SGHI}, s{SGLO}, 16
v_lshrrev_b32 v4, 4, v0        ; s1
v_lshlrev_b32 v5, 6, v4
v_add_u32 v5, s{S2R}, v5
v_mul_u32_u24 v5, 1280, v5
v_lshlrev_b32 v96, 4, v2       ; 16 i
v_sub_u32 v97, 240, v96
v_lshlrev_b32 v98, 2, v2       ; 4 i
v_sub_u32 v99, 60, v98
v_add_u32 v100, v5, v96
v_add_u32 v101, v5, v97
v_add_u32 v102, v5, v98
v_add_u32 v103, v5, v99
s_mul_i32 s69, s{H}, 160
s_lshl_b32 s70, s{WAVE}, 5
s_add_u32 s70, s69, s70
s_add_u32 s70, s70, s{PAR}
v_lshl_add_u32 v104, v2, 1, s70   ; e
v_mul_u32_u24 v104, 1280, v104
v_lshl_add_u32 v104, v3, 4, v104
v_mul_u32_u24 v6, {DP}, v4
v_add_u32 v7, v6, v98
v_add_u32 v6, v6, v96
s_waitcnt lgkmcnt(0)
""")
stamp(1)
XA, XC, XB, XD, XAS, XCS, XBS, XDS = 8, 12, 16, 20, 24, 25, 26, 27
def chunk_loads(base, ptr, vb, vm, vs, vsm):
    a(f"""
global_load_dwordx4 {Q4(base)}, v{vb}, {P(ptr)}
global_load_dwordx4 {Q4(base+4)}, v{vb}, {P(ptr)} offset:640
global_load_dwordx4 {Q4(base+8)}, v{vm}, {P(ptr)} offset:1024
global_load_dwordx4 {Q4(base+12)}, v{vm}, {P(ptr)} offset:384
global_load_dword v{base+16}, v{vs}, {P(ptr)} offset:256
global_load_dword v{base+17}, v{vs}, {P(ptr)} offset:896
global_load_dword v{base+18}, v{vsm}, {P(ptr)} offset:960
global_load_dword v{base+19}, v{vsm}, {P(ptr)} offset:320
""")
chunk_loads(8, X, 100, 101, 102, 103)
WRAW = 76
a(f"s_load_dword s{TAG}, {P(WS)}, 0\ns_mov_b32 s{SRDWS}, s{WS}\ns_mov_b32 s{SRDWS+1}, s{WS+1}")
a(f"s_cmp_lg_u32 s{Q}, {KQ}\ns_cbranch_scc1 L_now")
chunk_loads(WRAW, WRR, 96, 97, 98, 99)
a("L_now:")
BC, BS, FC, FS = 28, 48, 68, 72
a(f"s_cmp_ge_u32 s{WAVE}, s68\ns_cbranch_scc1 L_nomat")
for ks in range(5): a(f"global_load_dwordx4 {Q4(BC+4*ks)}, v104, {P(WR)} offset:{64*ks}")
for ks in range(5): a(f"global_load_dwordx4 {Q4(BS+4*ks)}, v104, {P(WI)} offset:{64*ks}")
a(f"""
v_cvt_f32_u32 v106, v2
v_mul_f32 v106, 0x3d000000, v106     ; t1/32
v_lshlrev_b32 v107, 2, v3
v_cvt_f32_u32 v107, v107
v_mul_f32 v107, v107, v106
""")
import struct
def fbits(f): return hex(struct.unpack("<I", struct.pack("<f", f))[0])
for jp in range(4):
    for z in range(2):
        jj = 2*jp + z
        off = 16*(jj//4) + jj % 4
        a(f"v_mov_b32 v108, {fbits(float(off))}\nv_fma_f32 v108, v108, v106, v107\nv_cos_f32 v{110+z}, v108\nv_sin_f32 v{112+z}, v108")
    a(f"v_cvt_pk_bf16_f32 v{FC+jp}, v110, v111\nv_cvt_pk_bf16_f32 v{FS+jp}, v112, v113")
a("s_waitcnt vmcnt(10)\ns_branch L_xok\nL_nomat:\ns_waitcnt vmcnt(0)\nL_xok:")
stamp(2)
SM, SRI, SXW, SPK = 116, 117, 118, 119
S1a, S1b, S2a, S2b, SWa, SWb = 120, 121, 122, 123, 124, 125
for r in (S1a, S1b, S2a, S2b, SWa, SWb): a(f"v_mov_b32 v{r}, 0")
for j in range(20):
    a(f"v_dot2c_f32_bf16 v{S1a + (j&1)}, s{ONES}, v{8+j}")
    a(f"v_dot2c_f32_bf16 v{S2a + (j&1)}, v{8+j}, v{8+j}")
a(f"s_cmp_lg_u32 s{Q}, {KQ}\ns_cbranch_scc1 L_now2")
for j in range(20):
    a(f"v_dot2c_f32_bf16 v{SWa + (j&1)}, v{WRAW+j}, v{8+j}")
a("L_now2:\ns_nop 2")
a(f"v_add_f32 v{S1a}, v{S1a}, v{S1b}\nv_add_f32 v{S2a}, v{S2a}, v{S2b}\nv_add_f32 v{SWa}, v{SWa}, v{SWb}")
for sh in (8, 4, 2, 1):
    for r in (S1a, S2a, SWa):
        d = SXW if (r == SWa and sh == 1) else r
        a(f"v_add_f32_dpp v{d}, v{r}, v{r} row_ror:{sh} {DPPF}")
INV640 = "0x3acccccd"
a(f"""
v_mul_f32 v{S1a}, {INV640}, v{S1a}          ; mean
v_mul_f32 v{S2a}, {INV640}, v{S2a}          ; E[x^2]
v_cvt_pk_bf16_f32 v{SPK}, v{S1a}, v{S1a}
v_fma_f32 v{S2a}, -v{S1a}, v{S1a}, v{S2a}   ; var
v_lshlrev_b32 v{SM}, 16, v{SPK}             ; m
v_max_f32 v{S2a}, 0, v{S2a}
v_mul_f32 v{S1b}, s{OPS}, v{SM}             ; -(1+sigma) m
""")
T, M = 96, 106
def el(base, j): return (base + j // 2, j & 1)
srcT = [(el(XA, k), el(XC, k)) for k in range(8)] + [(el(XAS, k), el(XCS, k)) for k in range(2)]
mj = [0, 7, 6, 5, 4, 3, 2, 1]
srcM = [(el(XB, mj[k]), el(XD, mj[k])) for k in range(8)] + [(el(XBS, k), el(XDS, k)) for k in range(2)]
chain = [f"v_cvt_pk_bf16_f32 v{S2a}, v{S2a}, v{S2a}", f"v_lshlrev_b32 v{S2a}, 16, v{S2a}", f"v_add_f32 v{S2a}, 0x3727c5ac, v{S2a}",
         f"v_cvt_pk_bf16_f32 v{S2a}, v{S2a}, v{S2a}", f"v_lshlrev_b32 v{S2a}, 16, v{S2a}", f"v_sqrt_f32 v{S2a}, v{S2a}",
         f"v_cvt_pk_bf16_f32 v{S2a}, v{S2a}, v{S2a}", f"v_bfi_b32 v{SPK}, s{MASKHI}, v{S2a}, v{SPK}", f"v_lshlrev_b32 v{S2a}, 16, v{S2a}", f"v_rcp_f32 v{SRI}, v{S2a}"]
ci = 0
for dst, src in ((M, srcM), (T, srcT)):
    for k in range(10):
        (r, hf), _ = src[k]
        a(f"v_dot2_f32_bf16 v{dst+k}, v{r}, s{ONEHI if hf else ONELO}, v{S1b}")
        if k % 2 == 1 and ci < len(chain): a(chain[ci]); ci += 1
for dst, src in ((M, srcM), (T, srcT)):
    for k in range(10):
        _, (r, hf) = src[k]
        a(f"v_dot2c_f32_bf16 v{dst+k}, s{SGHI if hf else SGLO}, v{r}")
assert ci == len(chain)
a(f"""
v_mov_b32_dpp v{S1a}, v{M} row_ror:1 {DPPF}        ; R1
v_mov_b32_dpp v{S2b}, v{M+8} row_ror:1 {DPPF}      ; R2
v_cmp_eq_u32 vcc, 0, v2
v_cndmask_b32 v{M}, v{S1a}, 0, vcc
v_cndmask_b32 v{M+8}, v{S2b}, v{S1a}, vcc
v_mul_f32 v{S2b}, s{SGHI}, v{S2b}                  ; z' = sigma*R2
v_mul_f32 v{S2b}, v{S2b}, v{SRI}
""")
DSR = 8
for k in range(10): a(f"v_mul_f32 v{T+k}, v{T+k}, v{SRI}")
for k in range(10):
    a(f"v_fma_f32 v{DSR+k}, -v{M+k}, v{SRI}, v{T+k}")
    a(f"v_fma_f32 v{M+k}, v{M+k}, v{SRI}, v{T+k}")
a(f"v_cndmask_b32 v{DSR}, v{DSR}, v{S2b}, vcc")
for k in range(4): a(f"v_cvt_pk_bf16_f32 v{18+k}, v{M+2*k}, v{M+2*k+1}")
a(f"v_cvt_pk_bf16_f32 v22, v{M+8}, v{M+9}")
a(f"ds_write_b128 v6, v[18:21]\nds_write_b32 v7, v22 offset:256")
for k in range(4): a(f"v_cvt_pk_bf16_f32 v{24+k}, v{DSR+2*k}, v{DSR+2*k+1}")
a(f"v_cvt_pk_bf16_f32 v23, v{DSR+8}, v{DSR+9}")
a(f"ds_write_b128 v6, v[24:27] offset:320\nds_write_b32 v7, v23 offset:576")
a(f"""
v_lshlrev_b32 v1, 4, v4
s_mov_b64 exec, vcc
ds_write_b128 v1, v[{SM}:{SM+3}] offset:{L_STAT}
s_mov_b64 exec, -1
s_waitcnt lgkmcnt(0)
s_add_u32 s{TAG}, s{TAG}, {TAGINC}
s_barrier
""")
stamp(3)
a(f"s_cmp_ge_u32 s{WAVE}, s68\ns_cbranch_scc1 L_A_nonunit")
BUF = [76, 92, 108]
ACC = [8, 12, 16, 20]
a(f"v_mul_u32_u24 v1, {DP}, v2\nv_lshl_add_u32 v1, v3, 4, v1")
def lds_reads(ks):
    b = BUF[ks % 3]
    for t, off in enumerate((0, 16*DP, 320, 16*DP + 320)):
        a(f"ds_read_b128 {Q4(b+4*t)}, v1 offset:{off + 64*ks}")
for ks in range(3): lds_reads(ks)
a(f"""
v_and_b32 v4, 31, v0
v_lshlrev_b32 v4, 6, v4
v_add_u32 v4, s{S2R}, v4
v_mul_u32_u24 v5, 1280, v4
s_mul_i32 s71, s{Q}, 80             ; E0
s_sub_u32 s72, 480, s71             ; blockB - 80
s_lshl_b32 s73, s{WAVE}, 5
s_add_u32 s74, s73, 16
s_cmp_lt_u32 s73, 80
s_cselect_b32 s75, s71, s72
s_add_u32 s73, s73, s75
s_cmp_lt_u32 s74, 80
s_cselect_b32 s75, s71, s72
s_add_u32 s74, s74, s75
s_min_u32 s73, s73, 624
s_min_u32 s74, s74, 624
v_mov_b32 v6, s73
v_mov_b32 v7, s74
s_mov_b32 vcc_lo, 0
s_mov_b32 vcc_hi, -1
v_cndmask_b32 v6, v6, v7, vcc
v_lshl_add_u32 v0, v6, 1, v5
global_load_dwordx4 v[24:27], v0, {P(X)}
global_load_dwordx4 v[124:127], v0, {P(X)} offset:16
""")
a(f"""
v_and_b32 v4, 1, v2
v_lshlrev_b32 v4, 15, v4
v_xor_b32 v4, s{SGLO}, v4
v_cmp_eq_u32 vcc, 0, v3
v_cndmask_b32 v4, 0, v4, vcc
v_mov_b32 v5, 0
v_mov_b32 v6, 0
v_mov_b32 v7, 0
s_waitcnt vmcnt(2)
s_cmp_eq_u32 s{PAR}, 0
s_cbranch_scc1 L_peven
s_mov_b64 exec, vcc
v_bfi_b32 v{BS}, s{MASKHI}, v{BS}, v4
s_mov_b64 exec, -1
v_mov_b32 v4, 0
L_peven:
s_nop 1
""")
for ks in range(5):
    b = BUF[ks % 3]
    rem = min(5, ks + 3) - ks - 1
    a(f"s_waitcnt lgkmcnt({4*rem})")
    c = None if ks == 0 else True
    for t in range(4):
        mat = (BC if t < 2 else BS) + 4*ks
        mfma16(ACC[t], b + 4*t, mat, ACC[t] if ks else None)
    if ks == 0:
        mfma16(ACC[0], b + 8, 4, ACC[0]); mfma16(ACC[1], b + 12, 4, ACC[1])
    if ks + 3 < 5: lds_reads(ks + 3)
AC, AB, F16, CC, SC, CB, SB, C16, B16, O0, O1, O16 = 76, 80, 84, 88, 92, 96, 100, 104, 108, 112, 116, 120
for r in range(4): a(f"v_mov_b32 v{F16+r}, 0xbf803f80")
a(f"""
s_mul_i32 s71, s{H}, {17*64}
s_add_u32 s71, s71, s{S2R}
s_mul_i32 s71, s71, {UROW}
s_mul_i32 s72, s{PAR}, 768
s_add_u32 s71, s71, s72
s_lshl_b32 s72, s{WAVE}, 7
s_add_u32 s71, s71, s72
s_add_u32 s71, s71, {UOFF}
s_add_u32 s72, s71, {16*64*UROW}
v_mul_u32_u24 v5, {64*UROW}, v2
v_lshl_add_u32 v5, v3, 4, v5
v_lshlrev_b32 v6, 6, v2
v_lshl_add_u32 v6, v3, 4, v6
v_cmp_eq_u32 vcc, 0, v2
v_mov_b32 v7, 0x80000000
v_cndmask_b32 v7, 0, v7, vcc
""")
for t, dst in ((0, AC), (2, AB)):
    for rt in range(2):
        s = ACC[t + rt]
        a(f"v_cvt_pk_bf16_f32 v{dst+2*rt}, v{s}, v{s+1}\nv_cvt_pk_bf16_f32 v{dst+2*rt+1}, v{s+2}, v{s+3}")
mfma16(CC, AC, FC); mfma16(SC, AC, FS); mfma16(CB, AB, FC); mfma16(SB, AB, FS); mfma16(C16, AC, F16); mfma16(B16, AB, F16)
for i in range(4):
    a(f"v_add_f32 v{8+i}, v{CC+i}, v{SB+i}\nv_sub_f32 v{12+i}, v{SC+i}, v{CB+i}")
for i in range(4): a(f"v_cvt_pk_bf16_f32 v{O0+i}, v{8+i}, v{12+i}")
a(f"buffer_store_dwordx4 {Q4(O0)}, v5, {WSR}, s71 offen sc1")
for i in range(4):
    a(f"v_sub_f32 v{8+i}, v{CC+i}, v{SB+i}\nv_add_f32 v{12+i}, v{SC+i}, v{CB+i}")
for i in range(4): a(f"v_cvt_pk_bf16_f32 v{O1+i}, v{8+i}, v{12+i}")
a(f"buffer_store_dwordx4 {Q4(O1)}, v5, {WSR}, s71 offen offset:64 sc1")
for i in range(4): a(f"v_cvt_pk_bf16_f32 v{O16+i}, v{C16+i}, v{B16+i}\nv_xor_b32 v{O16+i}, v{O16+i}, v7")
set_exec(0x0003000300030003)
a(f"buffer_store_dwordx4 {Q4(O16)}, v6, {WSR}, s72 offen sc1\ns_mov_b64 exec, -1")
stamp(4)
a(f"s_cmp_eq_u32 s{WAVE}, 5\ns_cbranch_scc1 L_A_w5")
a(f"""
v_mbcnt_lo_u32_b32 v1, -1, 0
v_mbcnt_hi_u32_b32 v1, -1, v1        ; lane
v_and_b32 v2, 31, v1                 ; row s1 / m
v_lshrrev_b32 v3, 5, v1
v_lshlrev_b32 v4, 6, v2
v_add_u32 v4, s{S2R}, v4             ; t
v_lshlrev_b32 v5, 12, v4
v_lshl_add_u32 v5, v3, 6, v5
v_lshlrev_b32 v6, 4, v2
ds_read_b64 v[6:7], v6 offset:{L_STAT}    ; m, rinv
""")
for j in range(4): a(f"global_load_dwordx4 {Q4(28+4*j)}, v5, {P(CR)} offset:{16*j}")
for j in range(4): a(f"global_load_dwordx4 {Q4(44+4*j)}, v5, {P(CI)} offset:{16*j}")
XF, G = 8, 108
xp = [24, 25, 26, 27, 124, 125, 126, 127]
def gpair(j, t):
    x0, x1, g0, g1 = XF + 2*j, XF + 2*j + 1, G + 2*j, G + 2*j + 1
    return [f"v_lshlrev_b32 v{x0}, 16, v{xp[j]}", f"v_and_b32 v{x1}, s{MASKHI}, v{xp[j]}",
            f"v_sub_f32 v{g0}, v{x0}, v6", f"v_sub_f32 v{g1}, v{x1}, v6",
            f"v_cvt_pk_bf16_f32 v{t}, v{g0}, v{g1}",
            f"v_lshlrev_b32 v{g0}, 16, v{t}", f"v_and_b32 v{g1}, s{MASKHI}, v{t}",
            f"v_mul_f32 v{g0}, v{g0}, v7", f"v_mul_f32 v{g1}, v{g1}, v7",
            f"v_cvt_pk_bf16_f32 v{t}, v{g0}, v{g1}",
            f"v_lshlrev_b32 v{g0}, 16, v{t}", f"v_and_b32 v{g1}, s{MASKHI}, v{t}",
            f"v_mul_f32 v{t}, {NL2E}, v{g0}", f"v_mul_f32 v{t+1}, {NL2E}, v{g1}",
            f"v_exp_f32 v{t}, v{t}", f"v_exp_f32 v{t+1}, v{t+1}",
            f"v_add_f32 v{t}, 1.0, v{t}", f"v_add_f32 v{t+1}, 1.0, v{t+1}",
            f"v_rcp_f32 v{t}, v{t}", f"v_rcp_f32 v{t+1}, v{t+1}",
            f"v_mul_f32 v{g0}, v{g0}, v{t}", f"v_mul_f32 v{g1}, v{g1}, v{t+1}",
            f"v_cvt_pk_bf16_f32 v{t}, v{g0}, v{g1}",
            f"v_lshlrev_b32 v{g0}, 16, v{t}", f"v_and_b32 v{g1}, s{MASKHI}, v{t}"]
def gpairs(js):
    seqs = [gpair(j, 92 + 2*n) for n, j in enumerate(js)]
    for step in range(len(seqs[0])):
        for s in seqs: a(s[step])
a("s_waitcnt vmcnt(11) lgkmcnt(0)")
gpairs([0, 1, 2, 3])
a("s_waitcnt vmcnt(8)\ns_barrier")
stamp(5)
gpairs([4, 5, 6, 7])
a(f"""
v_mov_b32 v92, s73
v_mov_b32 v93, s74
v_and_b32 v94, 4, v2
v_cmp_ne_u32 vcc, 0, v94
v_cndmask_b32 v92, v92, v93, vcc
v_lshrrev_b32 v93, 3, v2
v_lshl_add_u32 v92, v93, 2, v92
v_and_b32 v93, 3, v2
v_add_u32 v92, v92, v93
""")
ucol_offset(5, 92, 93, 94, 69)
a(f"""
s_sub_u32 s76, 32, s{T1}
s_cmp_gt_u32 s{T1}, 16
s_cselect_b32 s76, s76, s{T1}     ; t1s
s_cselect_b32 s77, 64, 0
s_cselect_b32 s78, 0x80008000, 0
s_mul_i32 s79, s{H}, 17
s_add_u32 s76, s76, s79
s_mul_i32 s76, s76, {64*UROW}
s_add_u32 s76, s76, {UOFF}
v_xor_b32 v5, s77, v5
s_mov_b32 s79, {32*UROW}
v_mad_u32_u24 v5, v3, s79, v5
s_mov_b32 s66, 0x05040100
s_mov_b32 s67, 0x07060302
s_waitcnt vmcnt(0)
""")
K = 60
for j in range(16):
    a(f"v_xor_b32 v{44+j}, s78, v{44+j}")
    a(f"v_perm_b32 v{K+2*j}, v{44+j}, v{28+j}, s66\nv_perm_b32 v{K+2*j+1}, v{44+j}, v{28+j}, s67")
a("s_barrier")
stamp(6)
UR = 28
for j in range(32):
    o = (j % 2) * UROW
    a(f"buffer_load_dword v{UR+j}, v5, {WSR}, s76 offen offset:{o} sc1")
    if j % 2 == 1 and j < 31: a(f"s_add_u32 s76, s76, {2*UROW}")
a(f"v_mov_b32 v1, {L_TOP}\nds_read_b32 v1, v1")
Y = 92
for ks in range(8):
    a(f"s_waitcnt vmcnt({28 - 4*ks})")
    a(f"v_mfma_f32_32x32x16_bf16 v[{Y}:{Y+15}], {Q4(UR+4*ks)}, {Q4(K+4*ks)}, {'0' if ks == 0 else f'v[{Y}:{Y+15}]'}")
stamp(7)
a(f"""
s_waitcnt lgkmcnt(0)
v_and_b32 v2, 0xffff, v1
v_lshrrev_b32 v3, 16, v1
v_cmp_ne_u32 vcc, v2, v4
v_cmp_ne_u32 s[76:77], v3, v4
s_and_b64 exec, vcc, s[76:77]
""")
for j in range(8):
    a(f"v_fma_f32 v{XF+2*j}, v{Y+2*j}, v{G+2*j}, v{XF+2*j}\nv_fma_f32 v{XF+2*j+1}, v{Y+2*j+1}, v{G+2*j+1}, v{XF+2*j+1}")
    a(f"v_cvt_pk_bf16_f32 v{28+j}, v{XF+2*j}, v{XF+2*j+1}")
    if j == 3: a(f"global_store_dwordx4 v0, v[28:31], {P(OUT)}")
a(f"global_store_dwordx4 v0, v[32:35], {P(OUT)} offset:16")
if TS:
    a("s_waitcnt vmcnt(0)"); stamp(8); dump_stamps(9)
a("s_endpgm")
a("L_A_w5:\ns_waitcnt vmcnt(0)\ns_barrier\ns_endpgm")
a(f"L_A_nonunit:\ns_cmp_lg_u32 s{WAVE}, 7\ns_cbranch_scc1 L_end")
a(f"""
v_mbcnt_lo_u32_b32 v1, -1, 0
v_mbcnt_hi_u32_b32 v1, -1, v1        ; lane
s_cmp_lg_u32 s{Q}, {KQ}
s_cbranch_scc1 L_A_nokeys
v_and_b32 v4, 31, v1
v_lshlrev_b32 v5, 4, v4
ds_read_b128 v[8:11], v5 offset:{L_STAT}
v_mov_b32 v12, 0
v_mov_b32 v13, 0
""")
for j in range(20): a(f"v_dot2c_f32_bf16 v{12+(j&1)}, s{ONES}, v{WRAW+j}")
a("v_add_f32 v12, v12, v13")
for sh in (8, 4, 2, 1): a(f"v_add_f32_dpp v12, v12, v12 row_ror:{sh} {DPPF}")
a(f"""
v_lshlrev_b32 v6, 6, v4
v_add_u32 v6, s{S2R}, v6
v_sub_u32 v6, 2047, v6               ; 2047 - idx
s_waitcnt lgkmcnt(0)
v_fma_f32 v10, -v8, v12, v10
v_mul_f32 v10, v10, v9               ; r
v_ashrrev_i32 v13, 31, v10
v_or_b32 v13, 0x80000000, v13
v_xor_b32 v10, v10, v13
v_and_b32 v10, 0xfffff800, v10
v_or_b32 v10, v10, v6
""")
wave_max_u32(70, 10, 13, 2)
a("v_cmp_ne_u32 vcc, s70, v10\nv_cndmask_b32 v14, 0, v10, vcc\ns_not_b64 vcc, vcc\ns_ff1_i32_b64 s72, vcc")
wave_max_u32(71, 14, 13, 2)
a(f"""
v_cmp_eq_u32 vcc, s71, v14
s_ff1_i32_b64 s73, vcc
v_readlane_b32 s72, v11, s72
v_readlane_b32 s73, v11, s73
v_mov_b32 v16, s70
v_mov_b32 v17, s{TAG}
v_mov_b32 v18, s71
v_mov_b32 v19, s{TAG}
v_mov_b32 v20, s72
v_mov_b32 v21, s73
v_cmp_le_u32 vcc, 16, v1
v_cndmask_b32 v16, v16, v20, vcc
v_cndmask_b32 v18, v18, v21, vcc
v_mul_u32_u24 v5, {RSTR}, v2
v_and_b32 v6, 16, v1
v_add_u32 v5, v5, v6
s_lshl_b32 s74, s{S2R}, 5
s_add_u32 s74, s74, {KEYS}
s_mov_b32 exec_hi, 0
buffer_store_dwordx4 v[16:19], v5, {WSR}, s74 offen sc1
s_mov_b64 exec, -1
L_A_nokeys:
""")
stamp(4)
a(f"""
v_mul_u32_u24 v5, {RSTR}, v1
v_mov_b32 v6, s{TAG}
s_mul_i32 s70, s{H}, {32*RSTR}
s_add_u32 s70, s70, {FLAGS}
s_lshl_b32 s71, s{S2R}, 3
s_lshl_b32 s72, s{PAR}, 2
s_add_u32 s71, s71, s72
s_add_u32 s71, s71, s70
s_mul_i32 s72, s{T1}, {RSTR}
s_add_u32 s72, s72, s70
v_lshlrev_b32 v7, 4, v1
s_barrier
""")
stamp(5)
a(f"""
s_mov_b32 exec_hi, 0
buffer_store_dword v6, v5, {WSR}, s71 offen sc1
s_mov_b32 exec_hi, 1
L_A_poll:
buffer_load_dwordx4 v[8:11], v7, {WSR}, s72 offen sc1
s_waitcnt vmcnt(0)
v_readlane_b32 s73, v8, 32
v_writelane_b32 v8, s{TAG}, 32
v_xor_b32 v9, s{TAG}, v9
v_xor_b32 v10, s{TAG}, v10
v_xor_b32 v11, s{TAG}, v11
v_xor_b32 v8, s{TAG}, v8
v_or3_b32 v9, v9, v10, v11
v_or_b32 v8, v8, v9
v_cmp_ne_u32 vcc, 0, v8
s_cbranch_vccz L_A_polled
""")
spin_tail("L_A_poll")
a(f"""
L_A_polled:
v_mov_b32 v8, s73
v_mov_b32 v9, {L_TOP}
ds_write_b32 v9, v8
s_waitcnt lgkmcnt(0)
s_barrier
""")
stamp(6); dump_stamps(7)
a("s_endpgm")

FJ = 46
a(f"""
L_roleFD:
s_sub_u32 s64, s2, 256
s_lshr_b32 s65, s64, 4
s_lshl_b32 s65, s65, 3
s_and_b32 s66, s64, 7
s_add_u32 s65, s65, s66         ; pair u
s_bfe_u32 s66, s64, 0x10003
s_lshl_b32 s65, s65, 1
s_add_u32 s65, s65, s66
s_cmp_ge_u32 s65, 75
s_cbranch_scc1 L_end
v_and_b32 v1, 63, v0            ; lane
s_mov_b32 s66, 0x05040100
s_mov_b32 s67, 0x07060302
s_waitcnt lgkmcnt(0)
s_load_dword s{TAG}, {P(WS)}, 0
s_mov_b32 s{SRDWS}, s{WS}
s_mov_b32 s{SRDWS+1}, s{WS+1}
s_cmp_eq_u32 s65, 74
s_cbranch_scc1 L_bump
s_cmp_ge_u32 s65, 54
s_cbranch_scc1 L_roleD
""")
def started_and_keys(publish):
    l0 = a.label("L_k"); lp = a.label("L_kp"); ld = a.label("L_kd")
    a(f"""
s_cmp_lg_u32 s{WAVE}, 0
s_cbranch_scc1 {l0}
s_lshl_b32 s70, s65, 2
s_add_u32 s70, s70, {STARTED}
v_mov_b32 v116, s{TAG}
v_mov_b32 v117, 0
s_mov_b64 exec, 1
buffer_store_dword v116, v117, {WSR}, s70 offen sc1
s_mov_b64 exec, -1
s_and_b32 s70, s65, {KREP-1}
s_mul_i32 s70, s70, {RSTR}
s_add_u32 s70, s70, {KEYS}
v_lshlrev_b32 v117, 5, v1
{lp}:
buffer_load_dwordx4 v[120:123], v117, {WSR}, s70 offen sc1
buffer_load_dwordx4 v[124:127], v117, {WSR}, s70 offen offset:16 sc1
s_waitcnt vmcnt(0)
v_xor_b32 v121, s{TAG}, v121
v_xor_b32 v123, s{TAG}, v123
v_xor_b32 v125, s{TAG}, v125
v_xor_b32 v127, s{TAG}, v127
v_or3_b32 v121, v121, v123, v125
v_or_b32 v121, v121, v127
v_cmp_ne_u32 vcc, 0, v121
s_cbranch_vccz {ld}
""")
    spin_tail(lp)
    a(f"{ld}:")
    wave_max_u32(70, 120, 118, 4)
    a("""
v_cmp_eq_u32 vcc, s70, v120
s_ff1_i32_b64 s72, vcc
v_readlane_b32 s72, v124, s72
v_cndmask_b32 v120, v120, v122, vcc
v_cndmask_b32 v124, v124, v126, vcc
""")
    wave_max_u32(71, 120, 118, 4)
    a(f"""
v_cmp_eq_u32 vcc, s71, v120
s_ff1_i32_b64 s73, vcc
v_readlane_b32 s73, v124, s73
v_mov_b32 v120, s70
v_mov_b32 v121, s71
v_mov_b32 v122, s72
v_mov_b32 v119, {L_BC}
v_mov_b32 v123, s73
ds_write_b128 v119, v[120:123]
""")
    if publish:
        lq = a.label("L_kq")
        a(f"""
s_cmp_lg_u32 s65, 0
s_cbranch_scc1 {lq}
s_andn2_b32 s70, 0x7ff, s70
s_andn2_b32 s71, 0x7ff, s71
s_lshl_b32 s71, s71, 16
s_or_b32 s70, s70, s71
v_mov_b32 v120, s70
v_mov_b32 v121, s{TAG}
v_mov_b32 v122, s{TAG}
v_mov_b32 v123, s{TAG}
v_mul_u32_u24 v119, {RSTR}, v1
s_mov_b32 s70, {FLAGS + 512}
buffer_store_dwordx4 v[120:123], v119, {WSR}, s70 offen sc1
{lq}:
""")
    a(f"""
s_waitcnt lgkmcnt(0)
{l0}:
s_barrier
v_mov_b32 v119, {L_BC}
ds_read_b128 v[120:123], v119
s_waitcnt lgkmcnt(0)
v_readfirstlane_b32 s4, v120
v_readfirstlane_b32 s5, v121
v_readfirstlane_b32 s6, v122
v_readfirstlane_b32 s7, v123
s_andn2_b32 s8, 0x7ff, s4        ; idx1
s_andn2_b32 s9, 0x7ff, s5        ; idx2
""")
a(f"""
s_and_b32 s70, s{WAVE}, 1
s_lshr_b32 s71, s{WAVE}, 1       ; kg
s_cmp_eq_u32 s70, 0
s_cselect_b32 s12, s{WG}, s{WU}
s_cselect_b32 s13, s{WG+1}, s{WU+1}
s_mov_b32 s14, {640*3456}
s_mov_b32 s15, 0x20000
s_mul_i32 s72, s71, {160*3456}
s_lshl_b32 s73, s65, 6
s_add_u32 s72, s72, s73
v_mul_u32_u24 v4, {8*3456}, v3
v_lshl_add_u32 v4, v2, 2, v4
""")
for ks in range(5):
    for j in range(8):
        a(f"buffer_load_dword v{8+8*ks+j}, v4, s[12:15], s72 offen")
        a(f"s_add_u32 s72, s72, {3456 if j < 7 else 25*3456}")
for r in range(20): a(f"v_mov_b32 v{88+r}, s{ONES}")
a(f"s_waitcnt lgkmcnt(0)\ns_add_u32 s{TAG}, s{TAG}, {TAGINC}")
for ks in range(5):
    a(f"s_waitcnt vmcnt({8*(4-ks)})")
    for jj in range(4):
        r = 8 + 8*ks + 2*jj
        a(f"v_perm_b32 v{48+8*ks+jj}, v{r+1}, v{r}, s66\nv_perm_b32 v{52+8*ks+jj}, v{r+1}, v{r}, s67")
stamp(1)
started_and_keys(True)
stamp(2)
a(f"""
s_lshr_b32 s71, s{WAVE}, 1
s_mul_i32 s10, s8, 1280
s_mul_i32 s11, s9, 1280
s_mul_i32 s71, s71, 320
s_add_u32 s10, s10, s71
s_add_u32 s11, s11, s71
v_mov_b32 v4, s10
v_mov_b32 v5, s11
v_cmp_eq_u32 vcc, 1, v2
v_cndmask_b32 v4, v4, v5, vcc
v_lshl_add_u32 v4, v3, 4, v4
""")
set_exec(0x0003000300030003)
for ks in range(5): a(f"global_load_dwordx4 {Q4(88+4*ks)}, v4, {P(X)} offset:{64*ks}")
a("s_mov_b64 exec, -1")
a(f"""
s_and_b32 s70, s{WAVE}, 1
s_lshl_b32 s70, s70, 10
s_lshr_b32 s71, s{WAVE}, 1
s_lshl_b32 s71, s71, 2
s_add_u32 s70, s70, s71
s_add_u32 s70, s70, {L_PART}
v_lshlrev_b32 v5, 5, v2
v_add_u32 v5, s70, v5
s_lshl_b32 s10, s6, 16           ; m tok0
s_lshl_b32 s11, s7, 16           ; m tok1
""")
for ks in range(5):
    a(f"s_waitcnt vmcnt({4-ks})")
    mfma16(108, 88+4*ks, 48+8*ks, 108 if ks else None)
    mfma16(112, 88+4*ks, 52+8*ks, 112 if ks else None)
stamp(3)
a(f"""
v_fma_f32 v108, -s10, v110, v108
v_fma_f32 v109, -s11, v110, v109
v_fma_f32 v112, -s10, v114, v112
v_fma_f32 v113, -s11, v114, v113
s_mov_b64 exec, 0xffff
ds_write_b32 v5, v108
ds_write_b32 v5, v112 offset:16
ds_write_b32 v5, v109 offset:512
ds_write_b32 v5, v113 offset:528
s_mov_b64 exec, -1
s_waitcnt lgkmcnt(0)
s_barrier
s_cmp_lg_u32 s{WAVE}, 0
s_cbranch_scc1 L_end
v_lshlrev_b32 v5, 4, v1
ds_read_b128 v[8:11], v5 offset:{L_PART}
ds_read_b128 v[12:15], v5 offset:{L_PART+1024}
s_and_b32 s10, s6, s{MASKHI}
s_and_b32 s11, s7, s{MASKHI}
v_mov_b32 v6, s10
v_mov_b32 v7, s11
s_mov_b32 vcc_lo, 0
s_mov_b32 vcc_hi, -1
v_cndmask_b32 v6, v6, v7, vcc
v_rcp_f32 v6, v6
s_waitcnt lgkmcnt(0)
v_add_f32 v8, v8, v9
v_add_f32 v12, v12, v13
v_add_f32 v10, v10, v11
v_add_f32 v14, v14, v15
v_add_f32 v8, v8, v10
v_add_f32 v12, v12, v14
v_mul_f32 v8, v8, v6
v_mul_f32 v12, v12, v6
v_cvt_pk_bf16_f32 v9, v8, v12
v_lshlrev_b32 v8, 16, v9
v_and_b32 v12, s{MASKHI}, v9
v_mul_f32 v9, {NL2E}, v8
v_exp_f32 v9, v9
v_add_f32 v9, 1.0, v9
v_rcp_f32 v9, v9
v_mul_f32 v8, v8, v9
""")
rb(8, 8)
a(f"""
v_mul_f32 v8, v8, v12
v_mov_b32_dpp v9, v8 quad_perm:[1,0,3,2] {DPPF}
v_and_b32 v7, 1, v1
v_cmp_eq_u32 vcc, 1, v7
v_cndmask_b32 v10, v8, v9, vcc
v_cndmask_b32 v11, v9, v8, vcc
v_cvt_pk_bf16_f32 v10, v10, v11
v_mov_b32 v11, s{TAG}
v_lshrrev_b32 v5, 1, v1
v_lshlrev_b32 v5, 3, v5
s_mov_b32 s70, {HSTR}
v_mad_u32_u24 v5, v7, s70, v5
s_lshl_b32 s70, s65, 8
s_add_u32 s70, s70, {HTAB}
buffer_store_dwordx2 v[10:11], v5, {WSR}, s70 offen sc1
""")
stamp(4); dump_stamps(5)
a("s_endpgm")
a(f"""
L_roleD:
s_sub_u32 s{FJ}, s65, 54         ; dj
s_mov_b32 s12, s{WD}
s_mov_b32 s13, s{WD+1}
s_mov_b32 s14, {1728*1280}
s_mov_b32 s15, 0x20000
s_mul_i32 s72, s{WAVE}, {7*32*1280}
s_lshl_b32 s73, s{FJ}, 6
s_add_u32 s72, s72, s73
v_mul_u32_u24 v4, {8*1280}, v3
v_lshl_add_u32 v4, v2, 2, v4
""")
for ks in range(7):
    for j in range(8):
        o = (j % 2) * 1280
        a(f"buffer_load_dword v{16+8*ks+j}, v4, s[12:15], s72 offen offset:{o}")
        if j % 2: a(f"s_add_u32 s72, s72, {2560 if j < 7 else 26*1280}")
a(f"""
s_lshl_b32 s74, s{WAVE}, 10
s_add_u32 s74, s74, {L_H}
v_lshl_add_u32 v6, v1, 4, s74
v_mov_b32 v120, 0
v_mov_b32 v121, 0
v_mov_b32 v122, 0
v_mov_b32 v123, 0
ds_write_b128 v6, v[120:123]
s_waitcnt lgkmcnt(0)
s_add_u32 s{TAG}, s{TAG}, {TAGINC}
""")
for ks in range(7):
    a(f"s_waitcnt vmcnt({8*(6-ks)})")
    for jj in range(4):
        r = 16 + 8*ks + 2*jj
        a(f"v_perm_b32 v{8+8*ks+jj}, v{r+1}, v{r}, s66\nv_perm_b32 v{12+8*ks+jj}, v{r+1}, v{r}, s67")
stamp(1)
started_and_keys(False)
stamp(2)
a(f"""
v_mov_b32 v4, s8
v_mov_b32 v5, s9
s_mov_b32 vcc_lo, 0
s_mov_b32 vcc_hi, -1
v_cndmask_b32 v4, v4, v5, vcc          ; t
s_lshl_b32 s70, s{WAVE}, 4
v_lshl_add_u32 v5, v4, 12, s70
global_load_dwordx4 v[116:119], v5, {P(CR)}
global_load_dwordx4 v[120:123], v5, {P(CI)}
v_and_b32 v6, 31, v1
s_lshl_b32 s70, s{FJ}, 5
v_add_u32 v6, s70, v6                  ; column
v_mul_u32_u24 v0, 1280, v4
v_lshl_add_u32 v0, v6, 1, v0
global_load_ushort v124, v0, {P(X)}
s_add_u32 s70, s{FJ}, 5
s_mul_i32 s70, s70, 13108
s_lshr_b32 s70, s70, 17                ; (dj+5)/10
s_and_b32 s{H}, s70, 1
s_mul_i32 s69, s{H}, 160
""")
ucol_offset(7, 6, 64, 65, 69)
a(f"""
v_and_b32 v64, 31, v4                  ; t1
v_sub_u32 v65, 32, v64
v_cmp_lt_u32 vcc, 16, v64
v_cndmask_b32 v64, v64, v65, vcc       ; t1s
v_cndmask_b32 v65, 0, 64, vcc
v_xor_b32 v7, v7, v65
v_mov_b32 v125, 0x80008000
v_cndmask_b32 v125, 0, v125, vcc
s_mov_b32 s70, {64*UROW}
v_mad_u32_u24 v7, v64, s70, v7
s_mul_i32 s76, s{H}, {17*64*UROW}
s_mul_i32 s70, s{WAVE}, {8*UROW}
s_add_u32 s76, s76, s70
s_add_u32 s76, s76, {UOFF}
""")
a(f"""
s_and_b32 s70, s{FJ}, 1
s_mul_i32 s70, s70, {HSTR}
s_mul_i32 s71, s{WAVE}, {7*256}
s_add_u32 s70, s70, s71
s_add_u32 s70, s70, {HTAB}
v_lshlrev_b32 v5, 4, v1
v_lshl_add_u32 v6, v1, 3, s74
s_cmp_eq_u32 s{WAVE}, 7
s_cselect_b32 s72, 0xffff, -1
s_cselect_b32 s73, 0, 0xffff
v_mov_b32 v113, s{TAG}
v_mov_b32 v115, s{TAG}
L_D_poll:
buffer_load_dwordx4 v[108:111], v5, {WSR}, s70 offen sc1
s_mov_b64 exec, s[72:73]
buffer_load_dwordx4 v[112:115], v5, {WSR}, s70 offen offset:1024 sc1
s_mov_b64 exec, -1
s_waitcnt vmcnt(0)
v_xor_b32 v109, s{TAG}, v109
v_xor_b32 v111, s{TAG}, v111
v_xor_b32 v126, s{TAG}, v113
v_xor_b32 v127, s{TAG}, v115
v_or3_b32 v109, v109, v111, v126
v_or_b32 v109, v109, v127
v_cmp_ne_u32 vcc, 0, v109
s_cbranch_vccz L_D_polled
""")
spin_tail("L_D_poll")
a(f"""
L_D_polled:
""")
stamp(3)
a(f"""
v_mov_b32 v109, v110
v_mov_b32 v113, v114
ds_write_b64 v6, v[108:109]
s_mov_b64 exec, s[72:73]
ds_write_b64 v6, v[112:113] offset:512
s_mov_b64 exec, -1
v_and_b32 v5, 1, v2
v_lshlrev_b32 v5, 6, v5
v_lshl_add_u32 v5, v3, 4, v5
v_add_u32 v5, s74, v5
s_waitcnt lgkmcnt(0)
""")
for ks in range(7): a(f"ds_read_b128 {Q4(72+4*ks)}, v5 offset:{128*ks}")
for ks in range(7):
    a(f"s_waitcnt lgkmcnt({6-ks})")
    mfma16(100, 72+4*ks, 8+8*ks, 100 if ks else None)
    mfma16(104, 72+4*ks, 12+8*ks, 104 if ks else None)
a(f"""
s_lshl_b32 s70, s{WAVE}, 2
s_add_u32 s70, s70, {L_PART}
v_lshlrev_b32 v5, 6, v2
v_add_u32 v5, s70, v5
s_mov_b64 exec, 0xffff
ds_write_b32 v5, v100
ds_write_b32 v5, v104 offset:32
ds_write_b32 v5, v101 offset:1024
ds_write_b32 v5, v105 offset:1056
s_mov_b64 exec, -1
""")
stamp(4)
a(f"""
s_cmp_lg_u32 s{WAVE}, 0
s_cbranch_scc1 L_D_fl
s_lshl_b32 s71, s{H}, 5
s_add_u32 s71, s71, s{FJ}
s_mul_i32 s71, s71, {RSTR}
s_add_u32 s71, s71, {FLAGS}
v_lshlrev_b32 v5, 3, v1
L_D_poll2:
buffer_load_dwordx2 v[108:109], v5, {WSR}, s71 offen sc1
s_waitcnt vmcnt(0)
v_xor_b32 v108, s{TAG}, v108
v_xor_b32 v109, s{TAG}, v109
v_or_b32 v108, v108, v109
v_cmp_ne_u32 vcc, 0, v108
s_cbranch_vccz L_D_fl
""")
spin_tail("L_D_poll2")
a("L_D_fl:\ns_barrier")
stamp(5)
for j in range(8):
    a(f"buffer_load_dword v{64+j}, v7, {WSR}, s76 offen offset:{(j%2)*UROW} sc1")
    if j % 2: a(f"s_add_u32 s76, s76, {2*UROW}")
for j in range(4):
    a(f"v_xor_b32 v{120+j}, v125, v{120+j}")
    a(f"v_perm_b32 v{72+2*j}, v{120+j}, v{116+j}, s66\nv_perm_b32 v{73+2*j}, v{120+j}, v{116+j}, s67")
a("v_mov_b32 v80, 0\nv_mov_b32 v81, 0")
a(f"v_lshlrev_b32 v5, 5, v1\nv_add_u32 v6, s70, v5\ns_waitcnt vmcnt(0)")
for j in range(8): a(f"v_dot2c_f32_bf16 v{80+(j&1)}, v{64+j}, v{72+j}")
a(f"""
v_add_f32 v80, v80, v81
ds_write_b32 v6, v80 offset:2048
s_waitcnt lgkmcnt(0)
s_barrier
s_cmp_lg_u32 s{WAVE}, 0
s_cbranch_scc1 L_end
ds_read_b128 v[8:11], v5 offset:{L_PART}
ds_read_b128 v[12:15], v5 offset:{L_PART+16}
ds_read_b128 v[16:19], v5 offset:{L_PART+2048}
ds_read_b128 v[20:23], v5 offset:{L_PART+2064}
s_mov_b32 vcc_lo, 0
s_mov_b32 vcc_hi, -1
v_mov_b32 v24, s4
v_mov_b32 v25, s5
v_cndmask_b32 v24, v24, v25, vcc      ; key
v_mov_b32 v25, s6
v_mov_b32 v26, s7
v_cndmask_b32 v25, v25, v26, vcc      ; stats
v_and_b32 v24, 0xfffff800, v24
v_or_b32 v24, 0x400, v24
v_not_b32 v26, v24
v_ashrrev_i32 v26, 31, v26
v_or_b32 v26, 0x80000000, v26
v_xor_b32 v24, v24, v26               ; r
""")
rb(24, 24)
a(f"""
v_mul_f32 v24, {NL2E}, v24
v_exp_f32 v24, v24
v_and_b32 v26, s{MASKHI}, v25
v_add_f32 v24, 1.0, v24
v_rcp_f32 v26, v26                    ; rinv
v_rcp_f32 v24, v24
v_lshlrev_b32 v25, 16, v25            ; m
v_lshlrev_b32 v27, 16, v124           ; x
v_sub_f32 v28, v27, v25
""")
rb(24, 24); rb(28, 28)
a("v_mul_f32 v28, v28, v26")
rb(28, 28)
a("s_waitcnt lgkmcnt(0)")
for b in (8, 16):
    a(f"v_add_f32 v{b}, v{b}, v{b+1}\nv_add_f32 v{b+2}, v{b+2}, v{b+3}\nv_add_f32 v{b+4}, v{b+4}, v{b+5}\nv_add_f32 v{b+6}, v{b+6}, v{b+7}")
    a(f"v_add_f32 v{b}, v{b}, v{b+2}\nv_add_f32 v{b+4}, v{b+4}, v{b+6}\nv_add_f32 v{b}, v{b}, v{b+4}")
rb(8, 8)
a("v_mul_f32 v8, v8, v24")
rb(8, 8)
a("v_add_f32 v8, v8, v28")
rb(8, 8)
a(f"v_mul_f32 v9, {NL2E}, v8\nv_exp_f32 v9, v9\nv_add_f32 v9, 1.0, v9\nv_rcp_f32 v9, v9\nv_mul_f32 v8, v8, v9")
rb(8, 8)
a(f"v_fma_f32 v8, v16, v8, v27\nv_cvt_pk_bf16_f32 v8, v8, v8\nglobal_store_short v0, v8, {P(OUT)}")
if TS:
    a("s_waitcnt vmcnt(0)"); stamp(6); dump_stamps(7)
a("s_endpgm")
a(f"""
L_bump:
s_cmp_lg_u32 s{WAVE}, 0
s_cbranch_scc1 L_end
v_lshlrev_b32 v5, 3, v1
v_min_u32 v6, 36, v1
v_lshlrev_b32 v6, 3, v6
s_mov_b32 s70, {FLAGS + 31*RSTR}
s_mov_b32 s71, {FLAGS + 63*RSTR}
s_mov_b32 s72, {STARTED}
s_waitcnt lgkmcnt(0)
s_add_u32 s{TAG}, s{TAG}, {TAGINC}
L_B_poll:
buffer_load_dwordx2 v[8:9], v5, {WSR}, s70 offen sc1
buffer_load_dwordx2 v[10:11], v5, {WSR}, s71 offen sc1
buffer_load_dwordx2 v[12:13], v6, {WSR}, s72 offen sc1
s_waitcnt vmcnt(0)
""")
for r in range(8, 14): a(f"v_xor_b32 v{r}, s{TAG}, v{r}")
a("v_or3_b32 v8, v8, v9, v10\nv_or3_b32 v11, v11, v12, v13\nv_or_b32 v8, v8, v11\nv_cmp_ne_u32 vcc, 0, v8\ns_cbranch_vccz L_B_done")
spin_tail("L_B_poll", 8)
a(f"""
L_B_done:
v_mov_b32 v5, 0
v_mov_b32 v6, s{TAG}
s_mov_b64 exec, 1
buffer_store_dword v6, v5, {WSR}, 0 offen sc1
L_end:
s_endpgm
""")
a(".fill 2048, 4, 0xbf800000")
hdr = open("cdna_kernels/" + NAME + ".s.ref").read().split("; Override")[0]
print(hdr + f"; @launch grid=({NWG},1,1) block=(512,1,1) lds={LDS_BYTES}\n" + HEAD + kernel_text(NAME + "_kernel", a.text(), 128, sgpr=100))
sys.stderr.write(f"instrs {a.count} nops {a.nops}\n")
```
